```python
import torch

def _softmax(x, axis=-1):
    return torch.softmax(x, dim=axis)
def _gelu(x):
    return torch.nn.functional.gelu(x, approximate="tanh")
def _silu(x):
    return torch.nn.functional.silu(x)
def _sigmoid(x):
    return torch.sigmoid(x)
def _layernorm(x, axis=-1, eps=1e-5):
    m = x.mean(dim=axis, keepdim=True)
    v = x.var(dim=axis, keepdim=True, unbiased=False)
    return (x - m) / torch.sqrt(v + eps)
def _scatter_add(tgt, idx, src, axis=0):
    return tgt.clone().index_add_(axis, idx, src)
def _segment_sum(src, seg, n):
    out = torch.zeros((n,) + src.shape[1:], dtype=src.dtype)
    return out.index_add_(0, seg, src)
def _pad(x, pw):
    flat = tuple(v for pair in reversed(pw) for v in pair)
    return torch.nn.functional.pad(x, flat)

kernel_name = 'recurrent_scan__mha_block__geglu_ffn__prompt'

def setup_inputs():

    _w = (lambda a: (lambda t: t.to(torch.bfloat16) if t.is_floating_point() else t)(torch.as_tensor(a)))
    def _A_setup():
        B, S, D, H = 1, 2048, 576, 32
        return {
            "x": _w((lambda *s: torch.randn(*s, dtype=torch.bfloat16) * 0.05)(B, S, D)),
            "wqkv": _w((lambda *s: torch.randn(*s, dtype=torch.bfloat16) * 0.05)(D, 3 * D)),
            "wo": _w((lambda *s: torch.randn(*s, dtype=torch.bfloat16) * 0.05)(D, D)),
        }
    _A_in = _A_setup()

    def _B_setup():
        B, S, D, F = 1, 2048, 576, 4608
        return {
            "x": _w((lambda *s: torch.randn(*s, dtype=torch.bfloat16) * 0.05)(B, S, D)),
            "w_gate": _w((lambda *s: torch.randn(*s, dtype=torch.bfloat16) * 0.05)(D, F)),
            "w_up": _w((lambda *s: torch.randn(*s, dtype=torch.bfloat16) * 0.05)(D, F)),
            "w_down": _w((lambda *s: torch.randn(*s, dtype=torch.bfloat16) * 0.05)(F, D)),
        }
    _B_in = _B_setup()

    return {
        "A_x": _A_in["x"],
        "A_wqkv": _A_in["wqkv"],
        "A_wo": _A_in["wo"],
        "B_x": _B_in["x"],
        "B_w_gate": _B_in["w_gate"],
        "B_w_up": _B_in["w_up"],
        "B_w_down": _B_in["w_down"],
    }

def reference(A_x, A_wqkv, A_wo, B_x, B_w_gate, B_w_up, B_w_down):
    def _A_ref(x, wqkv, wo):
        B, S, D = x.shape
        H = 32
        Dh = D // H
        qkv = (lambda x, *d: x.permute(*d))((x @ wqkv).reshape(B, S, 3, H, Dh), 2, 0, 3, 1, 4)
        q, k, v = qkv[0], qkv[1], qkv[2]
        scores = torch.einsum("bhqd,bhkd->bhqk", q, k) * (Dh ** -0.5)
        p = _softmax(scores, axis=-1)
        o = torch.einsum("bhqk,bhkd->bhqd", p, v)
        return (lambda x, *d: x.permute(*d))(o, 0, 2, 1, 3).reshape(B, S, D) @ wo

    def _B_ref(x, w_gate, w_up, w_down):
        return (_gelu(x @ w_gate) * (x @ w_up)) @ w_down

    x = A_x
    xn = _layernorm(x, axis=-1)
    s = _A_ref(xn, A_wqkv, A_wo)
    g = _silu(_B_ref(xn, B_w_gate, B_w_up, B_w_down))
    return x + s * g
```

```python
import re

TRANS = ("v_exp_f32", "v_log_f32", "v_rcp_f32", "v_rsq_f32", "v_sqrt_f32", "v_sin_f32", "v_cos_f32", "v_rcp_iflag_f32")

def regs_of(tok):
    tok = tok.strip()
    tok = re.sub(r"^-|^abs\(|\)$|^neg\(|\|", "", tok)
    m = re.fullmatch(r"([vas])\[(\d+):(\d+)\]", tok)
    if m: return {(m.group(1), i) for i in range(int(m.group(2)), int(m.group(3)) + 1)}
    m = re.fullmatch(r"([vas])(\d+)", tok)
    if m: return {(m.group(1), int(m.group(2)))}
    if tok == "vcc": return {("s", "vcc")}
    if tok == "exec": return {("s", "exec")}
    if tok == "m0": return {("s", "m0")}
    return set()

class Ins:
    __slots__ = ("text", "op", "ops", "mods", "wr", "rd", "kind", "states", "srcc", "passes")
    def __init__(self, text):
        self.text = text
        t = text.split(";")[0].strip()
        self.op = t.split()[0] if t else ""
        rest = t[len(self.op):].strip()
        parts = [p.strip() for p in rest.split(",")] if rest else []
        ops = []; mods = ""
        for i, p in enumerate(parts):
            w = p.split()
            if not w: continue
            ops.append(w[0])
            if len(w) > 1: mods += " " + " ".join(w[1:])
        self.ops = ops; self.mods = mods
        op = self.op
        self.wr = set(); self.rd = set(); self.srcc = set(); self.passes = 0
        self.states = 1
        R = [regs_of(o) for o in ops]
        if op.endswith(":") or op.startswith(".") or op == "":
            self.kind = "label"; self.states = 0
        elif op == "s_nop":
            self.kind = "nop"; self.states = int(ops[0], 0) + 1
        elif op.startswith("v_mfma"):
            self.kind = "mfma"; self.wr = R[0]; self.rd = R[1] | R[2] | R[3]; self.srcc = R[3]
            self.passes = 8 if "32x32" in op else 4
        elif op.startswith("v_"):
            self.kind = "valu"
            if op.startswith("v_cmp"):
                self.wr = R[0]; self.rd = set().union(*R[1:])
                if op.startswith("v_cmpx"): self.wr |= {("s", "exec")}
            elif op.startswith("v_permlane") and "swap" in op:
                self.wr = R[0] | R[1]; self.rd = R[0] | R[1]
            elif "_co_" in op or op.startswith("v_div_scale") or op.startswith("v_mad_u64"):
                self.wr = R[0] | R[1]; self.rd = set().union(*R[2:])
            else:
                self.wr = R[0]; self.rd = set().union(*R[1:]) if len(R) > 1 else set()
                if op.startswith(("v_fmac", "v_pk_fmac", "v_writelane", "v_dot2c")) or "dpp" in op or "row_" in mods or "quad_perm" in mods or "sdwa" in op:
                    self.rd |= R[0]
        elif op.startswith(("buffer_", "global_", "flat_")):
            self.kind = "vmem"
            if "store" in op or "atomic" in op:
                self.rd = set().union(*R)
            elif " lds" in (" " + mods + " ") or "load_lds" in op:
                self.rd = set().union(*R) | {("s", "m0")}
            else:
                self.wr = R[0]; self.rd = set().union(*R[1:])
                if "d16" in op: self.rd |= R[0]
        elif op.startswith("ds_"):
            self.kind = "ds"
            if op.startswith(("ds_read", "ds_bpermute", "ds_permute", "ds_swizzle")):
                self.wr = R[0]; self.rd = set().union(*R[1:])
            else:
                self.rd = set().union(*R)
        elif op.startswith("s_"):
            self.kind = "salu"
            if op.startswith(("s_cmp", "s_waitcnt", "s_barrier", "s_branch", "s_cbranch", "s_endpgm", "s_setprio", "s_sleep")):
                self.rd = set().union(*R) if R else set()
            else:
                self.wr = R[0] if R else set(); self.rd = set().union(*R[1:]) if len(R) > 1 else set()
                if "saveexec" in op: self.wr |= {("s", "exec")}
        else:
            raise ValueError("unknown instr " + text)

    def is_dpp(self):
        return "dpp" in self.op or "row_" in self.mods or "quad_perm" in self.mods
    def is_wide_store(self):
        return self.kind == "vmem" and "store" in self.op and ("x3" in self.op or "x4" in self.op)
    def store_data(self):
        if self.op.startswith("buffer_"): return regs_of(self.ops[0])
        return regs_of(self.ops[1])

def vg(s): return {r for r in s if r[0] in "va"}
def sg(s): return {r for r in s if r[0] == "s"}

def need(p, c):
    n = 0
    if p.kind == "valu":
        w = vg(p.wr); ws = sg(p.wr)
        if c.kind == "mfma" and (w & c.rd): n = max(n, 2)
        if c.kind == "mfma" and ("s", "exec") in ws: n = max(n, 4)
        if c.kind == "valu":
            if p.op.startswith(TRANS) and (w & (c.rd)) and not c.op.startswith(TRANS): n = max(n, 1)
            if p.op.startswith(TRANS) and (w & c.rd): n = max(n, 1)
            if (c.is_dpp() or c.op.startswith("v_permlane")) and (w & c.rd): n = max(n, 2)
            if c.op.startswith(("v_readlane", "v_readfirstlane")) and (w & c.rd): n = max(n, 1)
            if ws & c.rd: n = max(n, 4 if c.op.startswith(("v_readlane", "v_writelane", "v_div_fmas")) else 2)
            if ("s", "vcc") in ws and (c.op.startswith(("v_cndmask", "v_addc", "v_subb", "v_div_fmas"))): n = max(n, 4 if "div_fmas" in c.op else 2)
            if ("s", "exec") in ws and (c.is_dpp()): n = max(n, 5)
            if ("s", "exec") in ws and c.op.startswith(("v_readlane", "v_readfirstlane", "v_writelane", "v_permlane")): n = max(n, 4)
            if ("op_sel" in p.mods or "sdwa" in p.op) and not p.op.startswith("v_pk_") and (w & (c.rd | c.wr)): n = max(n, 1)
        if c.kind == "vmem" and (ws & c.rd): n = max(n, 5)
        if c.kind == "salu" and (ws & c.rd): n = max(n, 1)
    if p.kind == "mfma":
        x = {4: 8, 8: 12}[p.passes]
        if c.kind == "mfma":
            ab = regs_of(c.ops[1]) | regs_of(c.ops[2])
            if p.wr & ab: n = max(n, x)
            if p.wr & c.srcc and not (p.wr == c.srcc and p.passes == c.passes): n = max(n, x - 2)
            if (p.wr & c.wr) and not (p.wr & c.srcc): n = max(n, x-2)
        elif c.kind == "valu":
            if p.wr & (c.rd | c.wr): n = max(n, x)
            if p.srcc & c.wr: n = max(n, {4: 3, 8: 7}[p.passes])
        elif c.kind in ("vmem", "ds"):
            if p.wr & (c.rd | c.wr): n = max(n, x)
    if p.kind == "salu":
        if ("s", "m0") in p.wr and c.kind == "vmem" and ("s", "m0") in c.rd: n = max(n, 1)
    if p.is_wide_store() if p.kind == "vmem" else False:
        if (p.store_data() & c.wr): n = max(n, 2 if c.kind == "valu" else 1)
    if p.kind == "ds" and p.op.startswith(("ds_write_b128", "ds_write_b96")) :
        if (regs_of(p.ops[1]) & c.wr) and c.kind == "valu": n = max(n, 2)
    return n

class Asm:
    def __init__(self):
        self.L = []
        self.pads = 0
    def __call__(self, text):
        for line in text.split("\n"):
            line = line.strip()
            if not line or line.startswith(";"): continue
            self.emit(line)
    def emit(self, line):
        c = Ins(line)
        if c.kind != "label":
            dist = 0; req = 0
            for p in reversed(self.L[-40:]):
                if dist >= 20: break
                if p.kind == "label" and p.op.endswith(":"):
                    pass
                r = need(p, c) - dist
                if r > req: req = r
                dist += p.states
            if req > 0:
                self.L.append(Ins(f"s_nop {req-1}")); self.pads += req
        self.L.append(c)
    def text(self):
        out = []
        for i in self.L:
            out.append(i.text if i.kind == "label" else "    " + i.text)
        return "\n".join(out) + "\n"
    def check_backedge(self, label):
        idx = max(i for i, x in enumerate(self.L) if x.op == label + ":")
        body = self.L[idx:]
        head = [x for x in body if x.kind != "label"][:24]
        tail = body[-40:]
        for hi, c in enumerate(head):
            dist = sum(x.states for x in head[:hi])
            for p in reversed(tail):
                if dist >= 20: break
                r = need(p, c) - dist
                if r > 0: raise RuntimeError(f"backedge hazard {p.text} -> {c.text} short by {r}")
                dist += p.states

def kernel_text(name, body, vgpr, accum, sgpr=102):
    return f""".text
.globl {name}
.p2align 8
.type {name},@function
{name}:
{body}    s_endpgm
"""
def desc_text(name, vgpr, accum, sgpr=96):
    return f""".section .rodata,"a"
.p2align 6
.amdhsa_kernel {name}
  .amdhsa_next_free_vgpr {vgpr}
  .amdhsa_next_free_sgpr {sgpr}
  .amdhsa_accum_offset {accum}
  .amdhsa_group_segment_fixed_size 0
  .amdhsa_kernarg_size 80
  .amdhsa_user_sgpr_count 2
  .amdhsa_user_sgpr_kernarg_segment_ptr 1
  .amdhsa_system_sgpr_workgroup_id_x 1
  .amdhsa_float_denorm_mode_32 3
.end_amdhsa_kernel
"""
```

```python
from asmlib import *
from layout import *

N_LN, N_WL, N_WO = 256, 288, 54
GRID_A = N_LN + N_WL + N_WO
PREFETCH_A = True

def bf16_round(a, v, tmp=None):
    a(f"v_cvt_pk_bf16_f32 v{v}, v{v}, v{v}")
    a(f"v_and_b32 v{v}, 0xffff0000, v{v}")

def reduce32(a, v, t):
    for sh in (8, 4, 2, 1):
        a(f"v_add_f32_dpp v{v}, v{v}, v{v} row_ror:{sh} row_mask:0xf bank_mask:0xf")
    a(f"v_mov_b32 v{t}, v{v}")
    a(f"v_permlane16_swap_b32 v{v}, v{t}")
    a(f"v_add_f32 v{v}, v{v}, v{t}")

def gen_a():
    a = Asm()
    a(f"s_cmp_ge_u32 s2, {GRID_A}")
    a("s_cbranch_scc1 LA_end")
    a("s_load_dwordx4 s[4:7], s[0:1], 0")
    a(f"s_load_dwordx2 s[8:9], s[0:1], {A_WO}")
    a(f"s_load_dwordx4 s[12:15], s[0:1], {A_WG}")
    a(f"s_load_dwordx2 s[10:11], s[0:1], {A_WS}")
    a("v_lshrrev_b32 v1, 6, v0")
    a("v_and_b32 v0, 63, v0")
    a("v_readfirstlane_b32 s3, v1")
    a("s_waitcnt lgkmcnt(0)")
    srd(a, 16, 10, WSEND)
    a(f"s_cmp_ge_u32 s2, {N_WL + N_WO}")
    a("s_cbranch_scc1 LA_ln")
    a("v_and_b32 v2, 31, v0")
    a("v_lshrrev_b32 v3, 5, v0")
    a("v_lshlrev_b32 v4, 4, v0")
    a(f"s_cmp_ge_u32 s2, {N_WL}")
    a("s_cbranch_scc1 LA_wo")
    a("s_lshr_b32 s20, s2, 3")
    a("s_and_b32 s21, s2, 7")
    a("s_lshl_b32 s21, s21, 2")
    a("s_add_u32 s21, s21, s3")
    srd(a, 24, 6, SZ_WQKV)
    srd(a, 28, 12, SZ_WG)
    srd(a, 32, 14, SZ_WG)
    a("v_and_b32 v5, 15, v0")
    a("s_lshl_b32 s22, s21, 4")
    a("s_add_u32 s22, s22, 4096")
    a("v_add_u32 v5, s22, v5")
    a("v_lshlrev_b32 v5, 1, v5")
    a(f"v_mul_u32_u24 v6, {8*9216}, v3")
    a("v_add_u32 v5, v5, v6")
    a("s_mul_i32 s23, s21, 18")
    a("v_lshrrev_b32 v7, 4, v2")
    a("v_mul_u32_u24 v7, 560, v7")
    a("v_add3_u32 v7, v7, v2, s23")
    a("v_lshlrev_b32 v7, 1, v7")
    a(f"v_mul_u32_u24 v6, {8*3456}, v3")
    a("v_add_u32 v7, v7, v6")
    a("v_mov_b32 v8, 0x7ffffff0")
    a("v_add_u32 v9, 1152, v2")
    a("v_cmp_gt_u32 vcc, 18, v2")
    a("v_cndmask_b32 v8, v8, v9, vcc")
    a("v_subrev_u32 v9, 8, v2")
    a("v_lshrrev_b32 v10, 1, v2")
    a("v_cmp_eq_u32 vcc, 12, v10")
    a("v_cndmask_b32 v8, v8, v9, vcc")
    a("v_add_u32 v9, 566, v2")
    a("v_cmp_eq_u32 vcc, 13, v10")
    a("v_cndmask_b32 v8, v8, v9, vcc")
    a("v_cmp_gt_u32 vcc, 0x10000, v8")
    a("v_add_u32 v9, s23, v8")
    a("v_lshlrev_b32 v9, 1, v9")
    a("v_add_u32 v9, v9, v6")
    a("v_cndmask_b32 v8, v8, v9, vcc")
    a(f"s_mul_i32 s36, s20, {16*9216}")
    a(f"s_mul_i32 s37, s20, {16*3456}")
    def gather(dst, voff, srdn, sbase, stride):
        for j in range(8):
            if j: a(f"s_add_u32 s38, s{sbase}, {j*stride}")
            a(f"buffer_load_ushort v{dst + j}, v{voff}, s[{srdn}:{srdn+3}], s{38 if j else sbase} offen")
    def pack(dst):
        for j in range(4):
            a(f"v_lshl_or_b32 v{dst+j}, v{dst+2*j+1}, 16, v{dst+2*j}")
    gather(20, 7, 24, 37, 3456)
    gather(28, 8, 24, 37, 3456)
    a("s_mov_b32 exec_hi, 0x0000ffff")
    a("s_mov_b32 exec_lo, 0x0000ffff")
    gather(12, 5, 28, 36, 9216)
    a("s_mov_b32 exec_hi, 0xffff0000")
    a("s_mov_b32 exec_lo, 0xffff0000")
    gather(12, 5, 32, 36, 9216)
    a("s_mov_b64 exec, -1")
    a("s_mul_i32 s39, s21, 36")
    a("s_add_u32 s39, s39, s20")
    a("s_mul_i32 s39, s39, 3072")
    a(f"s_add_u32 s39, s39, {WL}")
    a("s_waitcnt vmcnt(16)")
    pack(20); pack(28)
    a("buffer_store_dwordx4 v[20:23], v4, s[16:19], s39 offen offset:1024")
    a("buffer_store_dwordx4 v[28:31], v4, s[16:19], s39 offen offset:2048")
    a("s_waitcnt vmcnt(2)")
    pack(12)
    a("buffer_store_dwordx4 v[12:15], v4, s[16:19], s39 offen")
    a("s_branch LA_end")
    a("LA_wo:")
    srd(a, 24, 8, SZ_WO)
    a(f"s_sub_u32 s20, s2, {N_WL}")
    a("s_lshl_b32 s20, s20, 2")
    a("s_add_u32 s20, s20, s3")
    a("s_mul_i32 s21, s20, 0x1556")
    a("s_lshr_b32 s21, s21, 16")
    a("s_mul_i32 s22, s21, 12")
    a("s_sub_u32 s22, s20, s22")
    a("s_mul_i32 s22, s22, 3")
    a("s_lshl_b32 s23, s21, 5")
    a("v_add_u32 v5, s23, v2")
    a("v_lshlrev_b32 v5, 1, v5")
    a(f"v_mul_u32_u24 v6, {4*1152}, v3")
    a("v_add_u32 v6, v5, v6")
    a(f"v_mul_u32_u24 v7, {72*1152}, v3")
    a("v_add_u32 v7, v5, v7")
    for t in range(3):
        a(f"s_add_u32 s36, s22, {t}")
        a("s_cmp_ge_u32 s36, 32")
        a(f"s_cbranch_scc1 LA_wo_rest{t}")
        a(f"s_mul_i32 s37, s36, {18*1152}")
        for j in range(8):
            a(f"s_add_u32 s38, s37, {(8*(j>>2) + (j&3))*1152}")
            a(f"buffer_load_ushort v{12+8*t + j}, v6, s[24:27], s38 offen")
        a(f"s_branch LA_wo_done{t}")
        a(f"LA_wo_rest{t}:")
        a("s_sub_u32 s36, s36, 32")
        a(f"s_mul_i32 s37, s36, {8*18*1152}")
        for j in range(8):
            a(f"s_add_u32 s38, s37, {(18*(j>>1) + 16 + (j&1))*1152}")
            a(f"buffer_load_ushort v{12+8*t + j}, v7, s[24:27], s38 offen")
        a(f"LA_wo_done{t}:")
    a("s_mul_i32 s39, s20, 3072")
    a(f"s_add_u32 s39, s39, {WOF}")
    for t in range(3):
        a(f"s_waitcnt vmcnt({16 - 8*t + t})")
        pack(12+8*t)
        a(f"buffer_store_dwordx4 v[{12+8*t}:{15+8*t}], v4, s[16:19], s39 offen offset:{1024*t}")
    a("s_branch LA_end")
    a("LA_ln:")
    srd(a, 24, 4, SZ_X)
    a(f"s_sub_u32 s20, s2, {N_WL + N_WO}")
    a("s_lshl_b32 s20, s20, 3")
    a("s_lshl_b32 s21, s3, 1")
    a("s_add_u32 s20, s20, s21")
    a("v_lshrrev_b32 v2, 5, v0")
    a("v_add_u32 v2, s20, v2")
    a("v_and_b32 v3, 31, v0")
    a("v_mul_u32_u24 v4, 1152, v2")
    a("v_lshl_add_u32 v4, v3, 2, v4")
    for i in range(9):
        a(f"buffer_load_dword v{10+i}, v4, s[24:27], 0 offen offset:{128*i}")
    if PREFETCH_A:
        srd(a, 28, 12, SZ_WG)
        srd(a, 32, 14, SZ_WG)
        a(f"s_sub_u32 s22, s2, {N_WL + N_WO}")
        a("s_lshl_b32 s22, s22, 2")
        a("s_add_u32 s22, s22, s3")
        a("s_mul_i32 s22, s22, 18")
        a("v_add_u32 v5, s22, v3")
        a("v_lshrrev_b32 v6, 5, v5")
        a("v_and_b32 v5, 31, v5")
        a("v_mul_u32_u24 v6, 9216, v6")
        a("v_lshl_add_u32 v5, v5, 7, v6")
        a("s_mov_b32 exec_lo, 0x3ffff")
        a("s_mov_b32 exec_hi, 0")
        a("buffer_load_dword v40, v5, s[28:31], 0 offen")
        a("buffer_load_dword v41, v5, s[32:35], 0 offen")
        a("s_mov_b64 exec, -1")
    a("v_lshrrev_b32 v5, 5, v2")
    a("v_mul_u32_u24 v5, 36864, v5")
    a("v_lshrrev_b32 v6, 2, v3")
    a("v_lshl_add_u32 v5, v6, 9, v5")
    a("v_and_b32 v6, 31, v2")
    a("v_lshl_add_u32 v5, v6, 4, v5")
    a("v_and_b32 v6, 3, v3")
    a("v_lshl_add_u32 v5, v6, 2, v5")
    npf = 2 if PREFETCH_A else 0
    for i in range(9):
        a(f"s_waitcnt vmcnt({8 - i + npf})")
        a(f"v_lshlrev_b32 v{20+2*i}, 16, v{10+i}")
        a(f"v_and_b32 v{21+2*i}, 0xffff0000, v{10+i}")
        if i == 0: a("v_add_f32 v6, v20, v21")
        else:
            a(f"v_add_f32 v6, v6, v{20+2*i}")
            a(f"v_add_f32 v6, v6, v{21+2*i}")
    reduce32(a, 6, 7)
    a(f"v_mul_f32 v6, {hexf(1.0/576)}, v6")
    for e in range(18):
        a(f"v_sub_f32 v8, v{20+e}, v6")
        if e == 0: a("v_mul_f32 v7, v8, v8")
        else: a("v_fmac_f32 v7, v8, v8")
    reduce32(a, 7, 8)
    a(f"v_mul_f32 v7, {hexf(1.0/576)}, v7")
    bf16_round(a, 6)
    bf16_round(a, 7)
    a(f"v_add_f32 v7, {hexf(1e-5)}, v7")
    bf16_round(a, 7)
    a("v_sqrt_f32 v7, v7")
    bf16_round(a, 7)
    a("v_rcp_f32 v7, v7")
    for i in range(9):
        a(f"v_sub_f32 v{20+2*i}, v{20+2*i}, v6")
        a(f"v_sub_f32 v{21+2*i}, v{21+2*i}, v6")
        a(f"v_cvt_pk_bf16_f32 v{10+i}, v{20+2*i}, v{21+2*i}")
        a(f"v_lshlrev_b32 v{20+2*i}, 16, v{10+i}")
        a(f"v_and_b32 v{21+2*i}, 0xffff0000, v{10+i}")
        a(f"v_mul_f32 v{20+2*i}, v{20+2*i}, v7")
        a(f"v_mul_f32 v{21+2*i}, v{21+2*i}, v7")
        a(f"v_cvt_pk_bf16_f32 v{10+i}, v{20+2*i}, v{21+2*i}")
        a(f"s_mov_b32 s22, {XN + 4096*i}")
        a(f"buffer_store_dword v{10+i}, v5, s[16:19], s22 offen")
    a("LA_end:")
    return a
```

```python
from asmlib import *
from layout import *
import os

SLOT = 49152
LDS_B = 3 * SLOT
ACC_B = 112
RATE = int(os.environ.get("B_RATE", "3"))
DEPTH = 3
PREFETCH_B = os.environ.get("B_PF", "1") == "1"
STAMP = os.environ.get("STAMP", "0") == "1"
PACKED = os.environ.get("B_PK", "1") == "1"
GELU_C1 = -2.0 * math.log2(math.e) * math.sqrt(2.0 / math.pi)
GELU_C2 = GELU_C1 * 0.044715

vLIN, vG, vU, vTR, vL, vPL, vMUL = 1, 2, 3, 4, 8, 9, 10
vA = 12
vC1, vONE = 28, 30
vACC = 32
vT = 96
sWS, sWG, sWU, sWD = 16, 20, 24, 28
sC2, sQS, sONES = 40, 42, 44
sXO, sLO, sQ0, sHO, sQMO, sKVO, sPLO, sLDSW, sTMP = 48, 49, 50, 51, 52, 53, 54, 55, 56

class VM:
    def __init__(self): self.ops = []
    def add(self, tag): self.ops.append(tag)
    def cnt(self, tag):
        idx = max(i for i, t in enumerate(self.ops) if t == tag)
        return len(self.ops) - 1 - idx

def gen_b():
    a = Asm(); vm = VM()
    a("s_cmp_ge_u32 s2, 256")
    a("s_cbranch_scc1 LB_end")
    if STAMP: a("s_memrealtime s[60:61]")
    a(f"s_load_dwordx4 s[4:7], s[0:1], {A_WG}")
    a(f"s_load_dwordx2 s[8:9], s[0:1], {A_WD}")
    a(f"s_load_dwordx2 s[10:11], s[0:1], {A_WS}")
    if STAMP: a(f"s_load_dwordx2 s[58:59], s[0:1], {A_WS}")
    a("v_lshrrev_b32 v1, 6, v0")
    a("v_and_b32 v0, 63, v0")
    a("v_readfirstlane_b32 s3, v1")
    a(f"v_lshlrev_b32 v{vLIN}, 4, v0")
    a("s_and_b32 s12, s2, 7")
    a("s_lshl_b32 s12, s12, 2")
    a("s_lshr_b32 s13, s2, 3")
    a("s_and_b32 s13, s13, 3")
    a("s_add_u32 s12, s12, s13")
    a("s_lshr_b32 s13, s2, 5")
    a("s_lshl_b32 s13, s13, 3")
    a("s_add_u32 s13, s13, s3")
    a(f"s_mul_i32 s{sXO}, s13, {36*1024}")
    a(f"s_mul_i32 s{sLO}, s12, {36*3072}")
    a(f"s_mul_i32 s14, s3, 5120")
    a(f"s_add_u32 s{sLO}, s{sLO}, s14")
    a(f"s_add_u32 s{sLO}, s{sLO}, {WL}")
    a("s_waitcnt lgkmcnt(0)")
    srd(a, sWS, 10, WSEND)
    def dmaL(c, i):
        return [f"s_add_u32 m0, s14, {c*SLOT + i*1024}",
                f"s_add_u32 s{sTMP}, s{sLO}, {c*36864 + i*1024}",
                f"buffer_load_dwordx4 v{vLIN}, s[{sWS}:{sWS+3}], s{sTMP} offen lds"]
    for c in range(3):
        for i in range(5):
            for t in dmaL(c, i): a(t)
            vm.add(("chunk", c))
        for ks in range(12*c, 12*c + 12):
            if ks % 4 == 0 and ks: a(f"s_add_u32 s{sXO}, s{sXO}, 4096")
            a(f"buffer_load_dwordx4 a[{4*ks}:{4*ks+3}], v{vLIN}, s[{sWS}:{sWS+3}], s{sXO} offen offset:{(ks%4)*1024}")
            vm.add(("x", ks))
    srd(a, sWG, 4, SZ_WG); srd(a, sWU, 6, SZ_WG); srd(a, sWD, 8, SZ_WD)
    if PREFETCH_B:
        a("s_lshl_b32 s15, s2, 3")
        a("s_add_u32 s15, s15, s3")
        a("s_mul_i32 s57, s15, 9")
        a("v_add_u32 v96, s57, v0")
        a("v_lshrrev_b32 v97, 5, v96")
        a("v_and_b32 v96, 31, v96")
        a("v_mul_u32_u24 v97, 9216, v97")
        a("v_lshl_add_u32 v96, v96, 7, v97")
        a("s_mul_i32 s57, s15, 21")
        a("v_add_u32 v97, s57, v0")
        a("v_lshlrev_b32 v97, 7, v97")
        a("s_mov_b64 exec, 0x1ff")
        a("s_movk_i32 s57, 4096")
        a(f"buffer_load_dword v111, v96, s[{sWG}:{sWG+3}], s57 offen"); vm.add("pf")
        a(f"buffer_load_dword v111, v96, s[{sWU}:{sWU+3}], s57 offen"); vm.add("pf")
        a("s_mov_b64 exec, 0x1fffff")
        a(f"buffer_load_dword v111, v97, s[{sWD}:{sWD+3}], 0 offen"); vm.add("pf")
        a("s_mov_b64 exec, -1")
    a("v_lshrrev_b32 v96, 3, v0")
    a("v_and_b32 v97, 7, v0")
    a("v_and_b32 v98, 2, v96")
    a("v_xor_b32 v97, v97, v98")
    a("v_mul_u32_u24 v96, 9216, v96")
    a(f"v_lshl_add_u32 v{vG}, v97, 4, v96")
    a(f"v_xor_b32 v{vU}, 64, v{vG}")
    a("v_bfe_u32 v96, v0, 4, 1")
    a("v_lshrrev_b32 v97, 5, v0")
    a("v_bfe_u32 v98, v0, 2, 2")
    a("v_and_b32 v99, 3, v0")
    a("v_mul_u32_u24 v100, 24576, v96")
    a("v_lshl_add_u32 v100, v97, 10, v100")
    a("v_lshl_add_u32 v100, v98, 7, v100")
    a("v_lshl_add_u32 v100, v99, 3, v100")
    a("v_lshrrev_b32 v98, 1, v98")
    a("v_lshl_or_b32 v98, v96, 1, v98")
    for fb in range(4):
        a(f"v_xor_b32 v99, {fb}, v98")
        a(f"v_lshl_add_u32 v{vTR+fb}, v99, 5, v100")
    a(f"v_mov_b32 v{vL}, v{vLIN}")
    a("v_and_b32 v96, 31, v0")
    a("v_subrev_u32 v98, 24, v96")
    a("v_lshlrev_b32 v98, 12, v98")
    a(f"v_lshl_add_u32 v{vPL}, v97, 3, v98")
    a("v_lshrrev_b32 v96, 1, v96")
    a("v_cmp_eq_u32 vcc, 12, v96")
    a(f"v_mov_b32 v{vMUL}, 1.0")
    a(f"v_mov_b32 v98, {hexf(QSCALE)}")
    a(f"v_cndmask_b32 v{vMUL}, v{vMUL}, v98, vcc")
    a(f"v_mov_b32 v{vMUL+1}, v{vMUL}")
    a(f"v_mov_b32 v{vC1}, {hexf(GELU_C1)}"); a(f"v_mov_b32 v{vC1+1}, {hexf(GELU_C1)}")
    a(f"v_mov_b32 v{vONE}, 1.0"); a(f"v_mov_b32 v{vONE+1}, 1.0")
    a(f"v_mov_b32 v110, 0x3f803f80")
    a(f"s_mov_b32 s{sC2}, {hexf(GELU_C2)}"); a(f"s_mov_b32 s{sC2+1}, {hexf(GELU_C2)}")
    a(f"s_mov_b32 s{sQS}, {hexf(QSCALE)}"); a(f"s_mov_b32 s{sQS+1}, {hexf(QSCALE)}")
    a(f"s_mov_b32 s{sONES}, {(1<<18)|(1<<22)}"); a(f"s_mov_b32 s{sONES+1}, {(1<<18)|(1<<22)}")
    a(f"s_mul_i32 s{sQ0}, s3, {24*9216}")
    a("s_lshl_b32 s57, s12, 7")
    a(f"s_add_u32 s{sQ0}, s{sQ0}, s57")
    a(f"s_mul_i32 s{sLDSW}, s3, 3072")
    a(f"s_mul_i32 s{sHO}, s13, {288*1024}")
    a("s_lshl_b32 s57, s12, 10")
    a(f"s_add_u32 s{sHO}, s{sHO}, {HB}")
    a(f"s_add_u32 s62, s{sHO}, s57")
    a(f"s_add_u32 s62, s62, {256*1024}")
    a("s_lshl_b32 s57, s12, 12")
    a(f"s_add_u32 s{sHO}, s{sHO}, s57")
    a(f"s_add_u32 s63, s{sHO}, {128*1024}")
    a("s_lshl_b32 s57, s12, 6")
    a("s_add_u32 s57, s57, s13")
    a(f"s_lshl_b32 s{sQMO}, s57, 10")
    a(f"s_add_u32 s{sQMO}, s{sQMO}, {QM}")
    a(f"s_mul_i32 s{sKVO}, s57, 3072")
    a(f"s_add_u32 s{sKVO}, s{sKVO}, {KV}")
    a(f"s_lshl_b32 s{sPLO}, s12, 14")
    a("s_lshl_b32 s57, s13, 6")
    a(f"s_add_u32 s{sPLO}, s{sPLO}, s57")
    a(f"s_add_u32 s{sPLO}, s{sPLO}, {PL}")

    seq = []
    for c in range(3):
        rng = range(12*c, 12*c + 12)
        if c < 2: seq += [dict(ch=c, set=t, ks=ks, kind="L", t=t) for ks in rng for t in range(3)]
        else: seq += [dict(ch=c, set=t, ks=ks, kind="L", t=t) for t in range(3) for ks in rng]
    for q in range(2):
        for c in range(3):
            seq += [dict(ch=3 + 3*q + c, set=(3 + t) % 4, ks=ks, kind="Q", t=t, q=q) for t in range(4) for ks in range(12*c, 12*c + 12)]
    N = len(seq); NCH = 9
    def dmaQ(ch, i):
        q, c = divmod(ch - 3, 3)
        up = i // 3; r = i % 3
        lds = (ch % 3)*SLOT + up*24576 + r*1024
        src = (192*c + 8*r)*9216 + q*4096
        return [f"s_add_u32 m0, s{sLDSW}, {lds}",
                f"s_add_u32 s{sTMP}, s{sQ0}, {src}",
                f"buffer_load_dwordx4 v{vU if up else vG}, s[{sWU if up else sWG}:{(sWU if up else sWG)+3}], s{sTMP} offen lds"]
    def reads(i):
        m = seq[i]; A = vA + 4*(i % 4); k = m["ks"] % 12
        if m["kind"] == "L":
            return [f"ds_read_b128 v[{A}:{A+3}], v{vL} offset:{(k*3 + m['t'])*1024}"]
        return [f"ds_read_b64_tr_b16 v[{A}:{A+1}], v{vTR + m['t']} offset:{k*2048}",
                f"ds_read_b64_tr_b16 v[{A+2}:{A+3}], v{vTR + m['t']} offset:{k*2048 + 512}"]
    def store(regs, soff, imm=0, tag="st"):
        return ("vm", f"buffer_store_dwordx4 v[{regs}:{regs+3}], v{vLIN}, s[{sWS}:{sWS+3}], s{soff} offen offset:{imm}")
    outsel = [0]
    def epi_gu(b, soff, imm):
        o = vT + 8 + 4*(outsel[0] & 1); outsel[0] += 1
        L = []
        for half in range(2):
            ps = [2*half, 2*half + 1]
            T = {p: vT + 2*(p & 1) + 4*half for p in ps}
            def G(p): return f"v[{b+2*p}:{b+2*p+1}]"
            def U(p): return f"v[{b+8+2*p}:{b+9+2*p}]"
            def TT(p): return f"v[{T[p]}:{T[p]+1}]"
            if PACKED:
                for p in ps: L.append(f"v_pk_mul_f32 {TT(p)}, {G(p)}, {G(p)}")
                for p in ps: L.append(f"v_pk_fma_f32 {TT(p)}, {TT(p)}, s[{sC2}:{sC2+1}], v[{vC1}:{vC1+1}]")
                for p in ps: L.append(f"v_pk_mul_f32 {TT(p)}, {TT(p)}, {G(p)}")
            else:
                for p in ps:
                    for e in range(2): L.append(f"v_mul_f32 v{T[p]+e}, v{b+2*p+e}, v{b+2*p+e}")
                for p in ps:
                    for e in range(2): L.append(f"v_fma_f32 v{T[p]+e}, v{T[p]+e}, s{sC2}, v{vC1}")
                for p in ps:
                    for e in range(2): L.append(f"v_mul_f32 v{T[p]+e}, v{T[p]+e}, v{b+2*p+e}")
            for p in ps:
                L.append(f"v_exp_f32 v{T[p]}, v{T[p]}"); L.append(f"v_exp_f32 v{T[p]+1}, v{T[p]+1}")
            if PACKED:
                for p in ps: L.append(f"v_pk_mul_f32 {U(p)}, {G(p)}, {U(p)}")
                for p in ps: L.append(f"v_pk_add_f32 {TT(p)}, {TT(p)}, v[{vONE}:{vONE+1}]")
            else:
                for p in ps:
                    for e in range(2): L.append(f"v_mul_f32 v{b+8+2*p+e}, v{b+2*p+e}, v{b+8+2*p+e}")
                for p in ps:
                    for e in range(2): L.append(f"v_add_f32 v{T[p]+e}, 1.0, v{T[p]+e}")
            for p in ps:
                L.append(f"v_rcp_f32 v{T[p]}, v{T[p]}"); L.append(f"v_rcp_f32 v{T[p]+1}, v{T[p]+1}")
            if PACKED:
                for p in ps: L.append(f"v_pk_mul_f32 {U(p)}, {U(p)}, {TT(p)}")
            else:
                for p in ps:
                    for e in range(2): L.append(f"v_mul_f32 v{b+8+2*p+e}, v{b+8+2*p+e}, v{T[p]+e}")
            for p in ps: L.append(f"v_cvt_pk_bf16_f32 v{o+p}, v{b+8+2*p}, v{b+9+2*p}")
        L.append(store(o, soff, imm))
        return L
    def epi_x(b):
        L = []
        for p in range(4): L.append(f"v_pk_mul_f32 v[{b+2*p}:{b+2*p+1}], v[{b+2*p}:{b+2*p+1}], s[{sQS}:{sQS+1}]")
        for p in range(4): L.append(f"v_cvt_pk_bf16_f32 v{vT+4+p}, v{b+8+2*p}, v{b+9+2*p}")
        L.append(store(vT+4, sKVO))
        for p in range(4): L.append(f"v_cvt_pk_bf16_f32 v{vT+p}, v{b+2*p}, v{b+2*p+1}")
        L.append(store(vT, sQMO))
        return L
    def epi_y(b):
        L = []
        for p in range(8): L.append(f"v_pk_mul_f32 v[{b+2*p}:{b+2*p+1}], v[{b+2*p}:{b+2*p+1}], v[{vMUL}:{vMUL+1}]")
        for p in range(8): L.append(f"v_cvt_pk_bf16_f32 v{b+p}, v{b+2*p}, v{b+2*p+1}")
        grp = ["s_mov_b32 exec_lo, 0x0f000000", "s_mov_b32 exec_hi, 0x0f000000"]
        for q in range(4):
            grp.append(("vm", f"buffer_store_dwordx2 v[{b+2*q}:{b+2*q+1}], v{vPL}, s[{sWS}:{sWS+3}], s{sPLO} offen offset:{16*q}"))
        grp.append("s_mov_b64 exec, -1")
        L.append(grp)
        for p in range(8): L.append(f"v_cndmask_b32 v{b+8+p}, v{b+p}, v110, s[{sONES}:{sONES+1}]")
        L.append(store(b+8, sKVO, 1024)); L.append(store(b+12, sKVO, 2048))
        return L
    def put(x):
        if isinstance(x, list):
            for y in x: put(y)
        elif isinstance(x, tuple):
            a(x[1]); vm.add("st")
        else: a(x)

    lg = []
    def issue_reads(i):
        for r in reads(i): a(r); lg.append(i)
    def wait_frag(i):
        n = len([t for t in lg if t > i])
        del lg[:len(lg) - n]
        return n
    fill = []
    dmaq = []
    def boundary(ch):
        if STAMP: a(f"s_memtime s[{70+2*ch}:{71+2*ch}]")
        a(f"s_waitcnt vmcnt({vm.cnt(('chunk', ch))}) lgkmcnt(0)")
        del lg[:]
        a("s_barrier")
        slot = ch % 3
        d = SLOT if slot else -2*SLOT
        if ch < 3: a(f"v_add_u32 v{vL}, {SLOT}, v{vL}")
        elif ch > 3:
            for fb in range(4):
                a(f"v_add_u32 v{vTR+fb}, {d & 0xffffffff}, v{vTR+fb}")
        if ch + 2 < NCH:
            for i in range(6): dmaq.append((ch + 2, i))
    a(f"s_waitcnt vmcnt({vm.cnt(('chunk', 0))})")
    a("s_barrier")
    if STAMP: a("s_memrealtime s[64:65]"); a("s_memtime s[70:71]"); a("s_waitcnt lgkmcnt(0)")
    for i in range(DEPTH): issue_reads(i)
    xseen = set()
    for i, m in enumerate(seq):
        j = i + DEPTH
        if j < N:
            if seq[j]["ch"] != seq[j-1]["ch"]: boundary(seq[j]["ch"])
            issue_reads(j)
        n = wait_frag(i)
        w = f"lgkmcnt({n})"
        if m["ks"] not in xseen:
            xseen.add(m["ks"]); w = f"vmcnt({min(63, vm.cnt(('x', m['ks'])))}) " + w
        a(f"s_waitcnt {w}")
        acc = vACC + 16*m["set"]; A = vA + 4*(i % 4); X = 4*m["ks"]
        c = "0" if m["ks"] == 0 else f"v[{acc}:{acc+15}]"
        if m["ks"] == 0:
            assert not [f for f in fill if f[2] == m["set"]], f"epilogue of set {m['set']} not finished at {i}"
        if m["kind"] == "L" and m["t"] == 2:
            a(f"v_mfma_f32_32x32x16_bf16 v[{acc}:{acc+15}], a[{X}:{X+3}], v[{A}:{A+3}], {c}")
        else:
            a(f"v_mfma_f32_32x32x16_bf16 v[{acc}:{acc+15}], v[{A}:{A+3}], a[{X}:{X+3}], {c}")
        if m["ks"] == 35:
            if m["kind"] == "L":
                items = [lambda: epi_gu(acc, 62, 0), lambda: epi_x(acc), lambda: epi_y(acc)][m["t"]]()
            else:
                items = epi_gu(acc, sHO if m["q"] == 0 else 63, 1024*m["t"])
            fill += [(i + 3, it, m["set"]) for it in items]
        if dmaq and i % 2 == 0:
            ch, k = dmaq.pop(0)
            for t in dmaQ(ch, k): a(t)
            vm.add(("chunk", ch))
        k = 0
        while fill and fill[0][0] <= i and k < RATE:
            put(fill.pop(0)[1]); k += 1
    if STAMP: a("s_memrealtime s[66:67]"); a("s_memtime s[88:89]")
    while fill: put(fill.pop(0)[1])
    if STAMP:
        a("s_waitcnt vmcnt(0)")
        a("s_memrealtime s[68:69]")
        a("s_waitcnt lgkmcnt(0)")
        a("v_mov_b32 v4, s60"); a("v_mov_b32 v5, s64"); a("v_mov_b32 v6, s66"); a("v_mov_b32 v7, s68")
        a("s_lshl_b32 s57, s2, 3"); a("s_add_u32 s57, s57, s3"); a("s_lshl_b32 s57, s57, 4")
        a(f"s_add_u32 s57, s57, {WSEND + 0x10000}")
        a("v_mov_b32 v8, s57")
        a("s_mov_b64 exec, 1")
        a("global_store_dwordx4 v8, v[4:7], s[58:59]")
        for k in range(9):
            a(f"s_sub_u32 s57, s{72+2*k}, s{70+2*k}")
            a(f"v_mov_b32 v{12+k}, s57")
        a("s_lshl_b32 s57, s2, 3"); a("s_add_u32 s57, s57, s3"); a("s_lshl_b32 s57, s57, 6")
        a(f"s_add_u32 s57, s57, {WSEND + 0x40000}")
        a("v_mov_b32 v8, s57")
        a("global_store_dwordx4 v8, v[12:15], s[58:59]")
        a("global_store_dwordx4 v8, v[16:19], s[58:59] offset:16")
        a("global_store_dwordx4 v8, v[20:23], s[58:59] offset:32")
    a("LB_end:")
    return a
```

```python
from asmlib import *
from layout import *
from kb import VM
import os

BLOCK_C = 768
VGPR_C = 168
KVS = 12288; WDS = 24576
L_KV = 0; L_WD = 4*KVS; L_PL = L_WD + 4*WDS
LDS_C = L_PL + 8192
STAMP = os.environ.get("STAMP", "0") == "1"
REM8 = os.environ.get("C_REM8", "1") == "1"
FORCE_SLOW = os.environ.get("C_SLOW", "0") == "1"
sWS, sWD = 16, 20
SPLIT_START = [0, 60, 120, 176, 232]

def stamp_out(a, base_idx_s, tmpv):
    a("s_waitcnt vmcnt(0)")
    a("s_memrealtime s[68:69]")
    a("s_waitcnt lgkmcnt(0)")
    a(f"v_mov_b32 v{tmpv}, s60"); a(f"v_mov_b32 v{tmpv+1}, s64"); a(f"v_mov_b32 v{tmpv+2}, s66"); a(f"v_mov_b32 v{tmpv+3}, s68")
    a("s_mul_i32 s57, s2, 12"); a("s_add_u32 s57, s57, s3"); a("s_lshl_b32 s57, s57, 4")
    a(f"s_add_u32 s57, s57, {WSEND + 0x20000}")
    a(f"v_mov_b32 v{tmpv+4}, s57")
    a("s_mov_b64 exec, 1")
    a(f"global_store_dwordx4 v{tmpv+4}, v[{tmpv}:{tmpv+3}], s[58:59]")

def gen_c():
    a = Asm()
    a("s_cmp_ge_u32 s2, 256")
    a("s_cbranch_scc1 LC_end")
    if STAMP: a("s_memrealtime s[60:61]")
    a(f"s_load_dwordx2 s[8:9], s[0:1], {A_WD}")
    a(f"s_load_dwordx2 s[10:11], s[0:1], {A_WS}")
    if STAMP: a(f"s_load_dwordx2 s[58:59], s[0:1], {A_WS}")
    a("v_lshrrev_b32 v1, 6, v0")
    a("v_and_b32 v0, 63, v0")
    a("v_readfirstlane_b32 s3, v1")
    a("v_lshlrev_b32 v1, 4, v0")
    a("s_and_b32 s12, s2, 7")
    a("s_lshl_b32 s13, s12, 2")
    a("s_lshr_b32 s14, s2, 3")
    a("s_and_b32 s15, s14, 3")
    a("s_add_u32 s13, s13, s15")
    a("s_waitcnt lgkmcnt(0)")
    srd(a, sWS, 10, WSEND)
    a("s_cmp_ge_u32 s3, 8")
    a("s_cbranch_scc1 LC_gemm")
    gen_attn(a)
    a("s_branch LC_end")
    a("LC_gemm:")
    gen_gemm(a)
    a("LC_end:")
    return a

def gen_attn(a):
    vLIN, vKA, vPLA = 1, 2, 3
    vQ, vQ2 = 4, 8
    vK, vK2, vV = 12, 16, 20
    vS = [32, 48]; vP = [64, 72]; vO = 80
    vT = 96
    a("s_lshr_b32 s24, s2, 5")
    a("s_lshl_b32 s24, s24, 3")
    a("s_add_u32 s24, s24, s3")
    a("s_lshl_b32 s25, s13, 6")
    a("s_add_u32 s25, s25, s24")
    a("s_lshl_b32 s25, s25, 10")
    a(f"s_add_u32 s25, s25, {QM}")
    a(f"buffer_load_dwordx4 v[{vQ}:{vQ+3}], v{vLIN}, s[{sWS}:{sWS+3}], s25 offen")
    a("v_lshrrev_b32 v96, 5, v0")
    a("v_and_b32 v97, 31, v0")
    a("v_lshlrev_b32 v97, 1, v97")
    a(f"v_lshl_add_u32 v{vPLA}, v96, 12, v97")
    a("s_lshl_b32 s26, s13, 14")
    a(f"s_add_u32 s26, s26, {PL}")
    a("s_lshl_b32 s27, s24, 6")
    a("s_add_u32 s27, s27, s26")
    a(f"buffer_load_ushort v{vQ2}, v{vPLA}, s[{sWS}:{sWS+3}], s27 offen")
    a(f"v_mov_b32 v{vT+8}, v{vPLA}")
    a(f"v_add_u32 v{vPLA}, {L_PL}, v{vPLA}")
    for r in (vQ2+1, vQ2+2, vQ2+3, vK2+2, vK2+3): a(f"v_mov_b32 v{r}, 0")
    a(f"v_mov_b32 v{vK2+1}, 0x3f80")
    for r in range(16): a(f"v_mov_b32 v{vO+r}, 0")
    def rdK(i, base=0):
        off = ((i // 4) % 4)*KVS + (i % 4)*3072
        a(f"ds_read_b128 v[{vK}:{vK+3}], v{vLIN} offset:{off}")
        a(f"ds_read_u16 v{vK2}, v{vPLA} offset:{i*64}")
    def rdV(i):
        off = ((i // 4) % 4)*KVS + (i % 4)*3072 + 1024
        a(f"ds_read_b128 v[{vV}:{vV+3}], v{vLIN} offset:{off}")
        a(f"ds_read_b128 v[{vV+4}:{vV+7}], v{vLIN} offset:{off+1024}")
    def mS0(d): a(f"v_mfma_f32_32x32x16_bf16 v[{d}:{d+15}], v[{vK}:{vK+3}], v[{vQ}:{vQ+3}], 0")
    def mS1(d):
        if REM8: a(f"v_mfma_f32_32x32x8bf16_1k v[{d}:{d+15}], v[{vK2}:{vK2+1}], v[{vQ2}:{vQ2+1}], v[{d}:{d+15}]")
        else: a(f"v_mfma_f32_32x32x16_bf16 v[{d}:{d+15}], v[{vK2}:{vK2+3}], v[{vQ2}:{vQ2+3}], v[{d}:{d+15}]")
    def mPV(h, p): a(f"v_mfma_f32_32x32x16_bf16 v[{vO}:{vO+15}], v[{vV+4*h}:{vV+4*h+3}], v[{p+4*h}:{p+4*h+3}], v[{vO}:{vO+15}]")
    a("s_barrier")
    if STAMP: a("s_memrealtime s[64:65]"); a("s_waitcnt lgkmcnt(0)")
    rdK(0)
    a("s_waitcnt vmcnt(0) lgkmcnt(0)")
    d = vS[0]
    mS0(d); mS1(d)
    a(f"v_max3_f32 v{vT}, v{d}, v{d+1}, v{d+2}")
    for r in range(3, 15, 2): a(f"v_max3_f32 v{vT}, v{vT}, v{d+r}, v{d+r+1}")
    a(f"v_max_f32 v{vT}, v{vT}, v{d+15}")
    a(f"v_mov_b32 v{vT+1}, v{vT}")
    a(f"v_permlane32_swap_b32 v{vT}, v{vT+1}")
    a(f"v_max_f32 v{vT}, v{vT}, v{vT+1}")
    a(f"v_sub_f32 v{vT}, 0, v{vT}")
    a(f"v_cvt_pk_bf16_f32 v{vT}, v{vT}, 0")
    a("s_mov_b32 exec_hi, 0")
    a(f"v_mov_b32 v{vQ2+1}, v{vT}")
    a("s_mov_b32 exec_hi, -1")
    mS0(d); mS1(d)
    rdK(1)
    for r in range(8): a(f"v_mov_b32 v{vP[1]+r}, 0")
    for r in range(8): a(f"v_mov_b32 v{vV+r}, 0")
    a("s_waitcnt lgkmcnt(0)")
    a("s_mov_b32 s28, 4")
    a(".p2align 6")
    a("LC_aloop:")
    for i in range(16):
        sb = vS[i % 2]; sn = vS[1 - i % 2]; pb = vP[i % 2]; po = vP[1 - i % 2]
        E = [f"v_exp_f32 v{sb+r}, v{sb+r}" for r in range(16)]
        C = [f"v_cvt_pk_bf16_f32 v{pb+r}, v{sb+2*r}, v{sb+2*r+1}" for r in range(8)]
        a("s_waitcnt lgkmcnt(2)")
        mS0(sn)
        for t in E[0:4]: a(t)
        mS1(sn)
        if (i + 2) % 4 == 0:
            a("s_waitcnt lgkmcnt(0)")
            a("s_barrier")
        if i == 14: a(f"v_add_u32 v{vPLA}, 1024, v{vPLA}")
        if i >= 14:
            off = (((i+2) // 4) % 4)*KVS + ((i+2) % 4)*3072
            a(f"ds_read_b128 v[{vK}:{vK+3}], v{vLIN} offset:{off}")
            a(f"ds_read_u16 v{vK2}, v{vPLA} offset:{(i+2-16)*64}")
        else: rdK(i + 2)
        for t in E[4:8] + C[0:2]: a(t)
        a("s_waitcnt lgkmcnt(2)")
        mPV(0, po)
        for t in E[8:12] + C[2:4]: a(t)
        mPV(1, po)
        rdV(i)
        for t in E[12:16] + C[4:8]: a(t)
    a("s_sub_u32 s28, s28, 1")
    a("s_cmp_lg_u32 s28, 0")
    a("s_cbranch_scc1 LC_aloop")
    a.check_backedge("LC_aloop")
    a("s_waitcnt lgkmcnt(0)")
    mPV(0, vP[1]); mPV(1, vP[1])
    if STAMP: a("s_memrealtime s[66:67]")
    a(f"v_mov_b32 v{vT}, 0x207")
    a(f"v_cmp_class_f32 vcc, v{vO}, v{vT}")
    a("s_mov_b64 s[30:31], vcc")
    for r in list(range(1, 10)):
        a(f"v_cmp_class_f32 vcc, v{vO+r}, v{vT}")
        if r >= 8: a("s_mov_b32 vcc_hi, 0")
        a("s_or_b64 s[30:31], s[30:31], vcc")
    a(f"v_cmp_nlt_f32 vcc, v{vO+10}, {hexf(2.0**40)}".replace(f"v{vO+10}, {hexf(2.0**40)}", f"{hexf(2.0**-40)}, v{vO+10}"))
    a("s_or_b64 s[30:31], s[30:31], vcc")
    a(f"v_cmp_ngt_f32 vcc, {hexf(2.0**40)}, v{vO+10}")
    a("s_or_b64 s[30:31], s[30:31], vcc")
    if FORCE_SLOW: a("s_mov_b64 s[30:31], -1")
    a("s_cmp_eq_u64 s[30:31], 0")
    a("s_cbranch_scc1 LC_fin")
    a(f"v_mov_b32 v{vQ2+1}, 0")
    a("s_mul_i32 s32, s13, 196608")
    a(f"s_add_u32 s32, s32, {KV}")
    a("s_add_u32 s33, s26, 8192")
    a(f"v_mov_b32 v{vT}, 0xff800000")
    d = vS[0]
    a("s_mov_b32 s28, 0")
    a("LC_slow1:")
    a("s_mul_i32 s34, s28, 3072"); a("s_add_u32 s34, s34, s32")
    a("s_lshl_b32 s35, s28, 6"); a("s_add_u32 s35, s35, s33")
    a(f"buffer_load_dwordx4 v[{vK}:{vK+3}], v{vLIN}, s[{sWS}:{sWS+3}], s34 offen")
    a(f"buffer_load_ushort v{vK2}, v{vT+8}, s[{sWS}:{sWS+3}], s35 offen")
    a("s_waitcnt vmcnt(0)")
    mS0(d); mS1(d)
    for r in range(0, 16, 2): a(f"v_max3_f32 v{vT}, v{vT}, v{d+r}, v{d+r+1}")
    a("s_add_u32 s28, s28, 1"); a("s_cmp_lt_u32 s28, 64"); a("s_cbranch_scc1 LC_slow1")
    a.check_backedge("LC_slow1")
    a(f"v_mov_b32 v{vT+1}, v{vT}")
    a(f"v_permlane32_swap_b32 v{vT}, v{vT+1}")
    a(f"v_max_f32 v{vT}, v{vT}, v{vT+1}")
    for r in range(16): a(f"v_mov_b32 v{vO+r}, 0")
    a("s_mov_b32 s28, 0")
    a("LC_slow2:")
    a("s_mul_i32 s34, s28, 3072"); a("s_add_u32 s34, s34, s32")
    a("s_lshl_b32 s35, s28, 6"); a("s_add_u32 s35, s35, s33")
    a(f"buffer_load_dwordx4 v[{vK}:{vK+3}], v{vLIN}, s[{sWS}:{sWS+3}], s34 offen")
    a(f"buffer_load_ushort v{vK2}, v{vT+8}, s[{sWS}:{sWS+3}], s35 offen")
    a(f"buffer_load_dwordx4 v[{vV}:{vV+3}], v{vLIN}, s[{sWS}:{sWS+3}], s34 offen offset:1024")
    a(f"buffer_load_dwordx4 v[{vV+4}:{vV+7}], v{vLIN}, s[{sWS}:{sWS+3}], s34 offen offset:2048")
    a("s_waitcnt vmcnt(0)")
    mS0(d); mS1(d)
    for r in range(16): a(f"v_sub_f32 v{d+r}, v{d+r}, v{vT}")
    for r in range(16): a(f"v_exp_f32 v{d+r}, v{d+r}")
    for r in range(8): a(f"v_cvt_pk_bf16_f32 v{vP[0]+r}, v{d+2*r}, v{d+2*r+1}")
    mPV(0, vP[0]); mPV(1, vP[0])
    a("s_add_u32 s28, s28, 1"); a("s_cmp_lt_u32 s28, 64"); a("s_cbranch_scc1 LC_slow2")
    a.check_backedge("LC_slow2")
    a("s_nop 15")
    a("LC_fin:")
    a(f"v_rcp_f32 v{vT}, v{vO+10}")
    for r in range(10): a(f"v_mul_f32 v{vO+r}, v{vO+r}, v{vT}")
    for r in range(5): a(f"v_cvt_pk_bf16_f32 v{vP[0]+r}, v{vO+2*r}, v{vO+2*r+1}")
    a("s_mul_i32 s34, s24, 36")
    a("s_add_u32 s35, s34, s13")
    a("s_lshl_b32 s35, s35, 10")
    a(f"s_add_u32 s35, s35, {OF}")
    a(f"buffer_store_dwordx4 v[{vP[0]}:{vP[0]+3}], v{vLIN}, s[{sWS}:{sWS+3}], s35 offen")
    a("s_lshr_b32 s35, s13, 2")
    a("s_lshl_b32 s35, s35, 9")
    a("s_and_b32 s36, s13, 3")
    a("s_lshl_b32 s36, s36, 2")
    a("s_add_u32 s35, s35, s36")
    a("s_lshl_b32 s34, s34, 10")
    a("s_add_u32 s35, s35, s34")
    a(f"s_add_u32 s35, s35, {OF + 32*1024}")
    a("s_mov_b32 exec_hi, 0")
    a(f"buffer_store_dword v{vP[0]+4}, v{vLIN}, s[{sWS}:{sWS+3}], s35 offen")
    if STAMP: stamp_out(a, 0, 4)

def gen_gemm(a):
    vm = VM()
    vLIN, vD, vTR = 1, 2, 6
    vA, vH, vACC = 8, 24, 64
    sW, sKVS, sKVL, sWDS, sWDL, sHS, sNP, sTMP = 24, 25, 26, 27, 28, 29, 30, 31
    srd(a, sWD, 8, SZ_WD)
    a(f"s_sub_u32 s{sW}, s3, 8")
    a(f"s_mul_i32 s{sKVL}, s{sW}, 3072")
    a(f"s_mul_i32 s{sKVS}, s13, 196608")
    a(f"s_add_u32 s{sKVS}, s{sKVS}, s{sKVL}")
    a(f"s_add_u32 s{sKVS}, s{sKVS}, {KV}")
    def dmaKV(c):
        for i in range(3):
            a(f"s_add_u32 m0, s{sKVL}, {L_KV + (c % 4)*KVS + i*1024}")
            a(f"s_add_u32 s{sTMP}, s{sKVS}, {c*KVS + i*1024}")
            a(f"buffer_load_dwordx4 v{vLIN}, s[{sWS}:{sWS+3}], s{sTMP} offen lds")
            vm.add(("kv", c))
    a("s_lshl_b32 s32, s13, 14")
    a(f"s_lshl_b32 s33, s{sW}, 11")
    a("s_add_u32 s32, s32, s33")
    a(f"s_add_u32 s32, s32, {PL + 8192}")
    dmaKV(0)
    for i in range(2):
        a(f"s_add_u32 m0, s33, {L_PL + i*1024}")
        a(f"s_add_u32 s{sTMP}, s32, {i*1024}")
        a(f"buffer_load_dwordx4 v{vLIN}, s[{sWS}:{sWS+3}], s{sTMP} offen lds")
        vm.add(("kv", 0))
    dmaKV(1)
    a("s_lshl_b32 s32, s12, 1")
    a("s_lshr_b32 s33, s14, 4")
    a("s_add_u32 s32, s32, s33")
    a("s_cmp_eq_u32 s32, 15")
    a("s_cbranch_scc1 LC_idle")
    a("s_mul_i32 s33, s32, 0x56")
    a("s_lshr_b32 s33, s33, 8")
    a("s_mul_i32 s34, s33, 3")
    a("s_sub_u32 s34, s32, s34")
    a("s_and_b32 s35, s14, 15")
    a("s_mul_i32 s36, s33, 60")
    a("s_mul_i32 s37, s33, 56")
    a("s_add_u32 s37, s37, 8")
    a("s_cmp_lt_u32 s33, 2")
    a("s_cselect_b32 s36, s36, s37")
    a(f"s_cselect_b32 s{sNP}, 15, 14")
    a("s_lshl_b32 s38, s35, 2")
    a(f"s_add_u32 s38, s38, s{sW}")
    a(f"s_mul_i32 s{sHS}, s38, 288")
    a(f"s_add_u32 s{sHS}, s{sHS}, s36")
    a(f"s_lshl_b32 s{sHS}, s{sHS}, 10")
    a(f"s_add_u32 s{sHS}, s{sHS}, {HB}")
    a(f"s_add_u32 s{sWDS}, s36, s{sW}")
    a(f"s_mul_i32 s{sWDS}, s{sWDS}, {16*1152}")
    a("s_mul_i32 s37, s34, 384")
    a(f"s_add_u32 s{sWDS}, s{sWDS}, s37")
    a(f"s_mul_i32 s{sWDL}, s{sW}, 6144")
    a("s_lshl_b32 s39, s33, 6")
    a("s_add_u32 s39, s39, s38")
    a("s_mul_i32 s39, s39, 18")
    a("s_mul_i32 s37, s34, 6")
    a("s_add_u32 s39, s39, s37")
    a("s_lshl_b32 s39, s39, 12")
    a(f"s_add_u32 s39, s39, {PART}")
    for i in range(3):
        a(f"v_add_u32 v8, {64*i}, v0")
        a("v_mul_u32_u24 v9, 0xaab, v8")
        a("v_lshrrev_b32 v9, 16, v9")
        a("v_mul_u32_u24 v10, 24, v9")
        a("v_sub_u32 v10, v8, v10")
        a("v_and_b32 v11, 2, v9")
        a("v_lshlrev_b32 v11, 1, v11")
        a("v_xor_b32 v10, v10, v11")
        a("v_mul_u32_u24 v9, 1152, v9")
        a(f"v_lshl_add_u32 v{vD+i}, v10, 4, v9")
    def dmaWD(c, i):
        a(f"s_add_u32 m0, s{sWDL}, {L_WD + (c % 4)*WDS + i*1024}")
        a(f"s_add_u32 s{sTMP}, s{sWDS}, {(c*64 + (i//3)*8)*1152}")
        a(f"buffer_load_dwordx4 v{vD + i % 3}, s[{sWD}:{sWD+3}], s{sTMP} offen lds")
        vm.add(("wd", c))
    def ldH(s):
        if s % 4 == 0 and s: a(f"s_add_u32 s{sHS}, s{sHS}, 4096")
        r = vH + 4*(s % 8)
        a(f"buffer_load_dwordx4 v[{r}:{r+3}], v{vLIN}, s[{sWS}:{sWS+3}], s{sHS} offen offset:{(s % 4)*1024}")
        vm.add(("h", s))
    for i in range(6): dmaWD(0, i)
    for s in range(4): ldH(s)
    for i in range(6): dmaWD(1, i)
    for s in range(4, 8): ldH(s)
    for i in range(6): dmaWD(2, i)
    a("v_lshrrev_b32 v8, 5, v0")
    a("v_bfe_u32 v9, v0, 2, 2")
    a("v_lshl_add_u32 v8, v8, 2, v9")
    a("v_mul_u32_u24 v8, 384, v8")
    a("v_bfe_u32 v10, v0, 4, 1")
    a("v_lshl_add_u32 v8, v10, 5, v8")
    a("v_and_b32 v10, 3, v0")
    a("v_lshl_add_u32 v8, v10, 3, v8")
    a(f"v_add_u32 v8, {L_WD}, v8")
    a("v_lshrrev_b32 v9, 1, v9")
    a("v_lshlrev_b32 v9, 6, v9")
    a(f"v_add_u32 v{vTR}, v8, v9")
    a(f"v_sub_u32 v{vTR+1}, v8, v9")
    lg = []
    def reads(m, s, j):
        A = vA + 4*(m % 4)
        off = (s % 4)*16*384 + j*64
        a(f"ds_read_b64_tr_b16 v[{A}:{A+1}], v{vTR + (j & 1)} offset:{off}")
        a(f"ds_read_b64_tr_b16 v[{A+2}:{A+3}], v{vTR + (j & 1)} offset:{off + 8*384}")
        lg.extend([m, m])
    for p in range(16):
        need = [vm.cnt(("kv", p))] + ([vm.cnt(("wd", p))] if p < 15 else [])
        a(f"s_waitcnt vmcnt({min(need)})")
        a("s_barrier")
        if p == 0 and STAMP: a("s_memrealtime s[64:65]"); a("s_waitcnt lgkmcnt(0)")
        if p < 15 and p > 0:
            d = WDS if p % 4 else -3*WDS
            for k in range(2): a(f"v_add_u32 v{vTR+k}, {d & 0xffffffff}, v{vTR+k}")
        if p == 14:
            a(f"s_cmp_eq_u32 s{sNP}, 14")
            a("s_cbranch_scc1 LC_skip14")
        seq = [(4*p + s, j) for s in range(4) for j in range(6)] if p < 15 else []
        for m in range(min(3, len(seq))): reads(m, *seq[m])
        if p + 2 < 16: dmaKV(p + 2)
        dq = [(p + 3, i) for i in range(6)] if p + 3 < 15 else []
        for m, (s, j) in enumerate(seq):
            if m + 3 < 24: reads(m + 3, *seq[m + 3])
            n = len([t for t in lg if t > m]); del lg[:len(lg) - n]
            w = f"lgkmcnt({n})"
            if j == 0: w = f"vmcnt({vm.cnt(('h', s))}) " + w
            a(f"s_waitcnt {w}")
            acc = vACC + 16*j; A = vA + 4*(m % 4); Hh = vH + 4*(s % 8)
            c = "0" if s == 0 else f"v[{acc}:{acc+15}]"
            a(f"v_mfma_f32_32x32x16_bf16 v[{acc}:{acc+15}], v[{A}:{A+3}], v[{Hh}:{Hh+3}], {c}")
            if j == 5 and s + 8 < 60: ldH(s + 8)
            if dq and m % 2 == 1: dmaWD(*dq.pop(0))
        if p == 14: a("LC_skip14:")
    a("s_barrier")
    if STAMP: a("s_memrealtime s[66:67]")
    a("s_nop 7")
    for j in range(6):
        for q in range(4):
            r = vACC + 16*j + 4*q
            a(f"buffer_store_dwordx4 v[{r}:{r+3}], v{vLIN}, s[{sWS}:{sWS+3}], s39 offen offset:{q*1024}")
        if j < 5: a("s_add_u32 s39, s39, 4096")
    if STAMP: stamp_out(a, 0, 4)
    a("s_branch LC_end")
    a("LC_idle:")
    vm2 = VM(); vm2.ops = [("kv", 0)]*5 + [("kv", 1)]*3
    vm.ops = vm2.ops
    for p in range(16):
        a(f"s_waitcnt vmcnt({vm.cnt(('kv', p))})")
        a("s_barrier")
        if p + 2 < 16: dmaKV(p + 2)
    a("s_barrier")
```

```python
from asmlib import *
from layout import *
from kb import VM
import os

GRID_D = 192; BLOCK_D = 256
YROW = 208
L_Y = 4*3*6*1024
LDS_D = L_Y + 64*YROW
ACC_D = 256; VGPR_D = 256 + 180
STAMP = os.environ.get("STAMP", "0") == "1"

def gen_d():
    a = Asm(); vm = VM()
    sWS, sX, sO = 16, 20, 24
    vLIN, vXO, vYW, vYR, vT = 1, 2, 5, 6, 8
    vACC, vXD, vP = 16, 112, 124
    a(f"s_cmp_ge_u32 s2, {GRID_D}")
    a("s_cbranch_scc1 LD_end")
    if STAMP: a("s_memrealtime s[60:61]")
    a(f"s_load_dwordx2 s[6:7], s[0:1], {A_X}")
    a(f"s_load_dwordx2 s[8:9], s[0:1], {A_OUT}")
    a(f"s_load_dwordx2 s[10:11], s[0:1], {A_WS}")
    if STAMP: a(f"s_load_dwordx2 s[58:59], s[0:1], {A_WS}")
    a("v_lshrrev_b32 v1, 6, v0")
    a("v_readfirstlane_b32 s3, v1")
    a("v_and_b32 v7, 63, v0")
    a(f"v_lshlrev_b32 v{vLIN}, 4, v7")
    a("s_and_b32 s12, s2, 7")
    a("s_lshr_b32 s13, s2, 3")
    a("s_mul_i32 s14, s13, 43")
    a("s_lshr_b32 s14, s14, 8")
    a("s_mul_i32 s15, s14, 6")
    a("s_sub_u32 s15, s13, s15")
    a("s_lshl_b32 s12, s12, 2")
    a("s_add_u32 s14, s14, s12")
    a("s_mul_i32 s28, s3, 9")
    a("s_mul_i32 s29, s14, 72")
    a("s_add_u32 s29, s29, s28")
    a("s_lshl_b32 s29, s29, 10")
    a(f"s_add_u32 s30, s29, {OF}")
    a(f"s_add_u32 s31, s30, {36*1024}")
    a("s_mul_i32 s29, s15, 108")
    a("s_add_u32 s29, s29, s28")
    a("s_lshl_b32 s29, s29, 10")
    a(f"s_add_u32 s32, s29, {WOF}")
    a(f"s_add_u32 s33, s32, {36*1024}")
    a(f"s_add_u32 s34, s32, {72*1024}")
    a("s_waitcnt lgkmcnt(0)")
    srd(a, sWS, 10, WSEND)
    a(f"v_add_u32 v{vT+7}, 0x10000, v{vLIN}")
    fr = lambda k, i: 4*(5*k + i)
    for k in range(9):
        if k % 4 == 0 and k:
            for i in range(5): a(f"s_add_u32 s{30+i}, s{30+i}, 4096")
        for i in range(5):
            r = fr(k, i)
            a(f"buffer_load_dwordx4 a[{r}:{r+3}], v{vLIN}, s[{sWS}:{sWS+3}], s{30+i} offen offset:{(k%4)*1024}")
            vm.add(("f", k))
    a("s_mul_i32 s35, s14, 36")
    a("s_mul_i32 s36, s15, 3")
    a("s_add_u32 s35, s35, s36")
    a("s_lshl_b32 s35, s35, 2")
    a("s_add_u32 s35, s35, s3")
    a("s_lshl_b32 s35, s35, 10")
    a(f"s_add_u32 s35, s35, {PART}")
    for u in range(6):
        i, j = u // 3, u % 3
        for sp in range(NSPLIT):
            r = vP + 4*(u*NSPLIT + sp)
            a(f"s_add_u32 s36, s35, {((sp*64 + i)*18 + j)*4096}")
            a(f"buffer_load_dwordx4 v[{r}:{r+3}], v{vLIN}, s[{sWS}:{sWS+3}], s36 offen")
            vm.add(("p", u))
    srd(a, sX, 6, SZ_X); srd(a, sO, 8, SZ_X)
    a(f"s_mul_i32 s37, s14, {64*1152}")
    a("s_mul_i32 s38, s15, 192")
    a("s_add_u32 s37, s37, s38")
    for i in range(3):
        a(f"v_add_u32 v8, {256*i}, v0")
        a("v_mul_u32_u24 v9, 0x1556, v8")
        a("v_lshrrev_b32 v9, 16, v9")
        a("v_mul_u32_u24 v10, 12, v9")
        a("v_sub_u32 v10, v8, v10")
        a("v_lshlrev_b32 v10, 4, v10")
        a("v_mul_u32_u24 v11, 1152, v9")
        a(f"v_add_u32 v{vXO+i}, v11, v10")
        a(f"v_mul_u32_u24 v9, {YROW}, v9")
        a(f"v_add_u32 v{12+i}, v9, v10")
        a(f"buffer_load_dwordx4 v[{vXD+4*i}:{vXD+4*i+3}], v{vXO+i}, s[{sX}:{sX+3}], s37 offen")
        vm.add("x")
    a("v_and_b32 v8, 31, v7")
    a(f"v_mul_u32_u24 v8, {YROW}, v8")
    a("v_lshrrev_b32 v9, 5, v7")
    a("v_lshl_add_u32 v8, v9, 3, v8")
    a("s_lshl_b32 s38, s3, 4")
    a(f"s_add_u32 s38, s38, {L_Y}")
    a(f"v_add_u32 v{vYW}, s38, v8")
    a("s_mul_i32 s40, s3, 18432")
    a(f"v_add_u32 v{vYR}, s40, v{vLIN}")
    if STAMP: a("s_memrealtime s[64:65]")
    for k in range(9):
        a(f"s_waitcnt vmcnt({min(63, vm.cnt(('f', k)))})")
        for u in range(6):
            i, j = u // 3, u % 3
            acc = vACC + 16*u; A = fr(k, 2 + j); B = fr(k, i)
            c = "0" if k == 0 else f"v[{acc}:{acc+15}]"
            a(f"v_mfma_f32_32x32x16_bf16 v[{acc}:{acc+15}], a[{A}:{A+3}], a[{B}:{B+3}], {c}")
    for w in range(4):
        a(f"s_cmp_lg_u32 s3, {w}")
        a(f"s_cbranch_scc1 LD_w{w}")
        for u in range(6):
            for q in range(4):
                if q == w: continue
                sl = (w - q - 1) & 3
                r = vACC + 16*u + 4*q
                a(f"ds_write_b128 v{vLIN}, v[{r}:{r+3}] offset:{(q*18 + sl*6 + u)*1024 & 0xffff}" if (q*18 + sl*6 + u)*1024 < 65536 else
                  f"ds_write_b128 v{vT+7}, v[{r}:{r+3}] offset:{(q*18 + sl*6 + u)*1024 - 65536}")
            if w:
                for rr in range(4): a(f"v_mov_b32 v{vACC+16*u+rr}, v{vACC+16*u+4*w+rr}")
        a(f"LD_w{w}:")
    a("s_waitcnt lgkmcnt(0)")
    a("s_barrier")
    for u in range(6):
        for sl in range(3):
            r = vACC + 16*u + 4 + 4*sl
            a(f"ds_read_b128 v[{r}:{r+3}], v{vYR} offset:{(sl*6 + u)*1024}")
    if STAMP: a("s_memrealtime s[66:67]")
    NL2E = hexf(-math.log2(math.e))
    for u in range(6):
        i, j = u // 3, u % 3
        a(f"s_waitcnt vmcnt({vm.cnt(('p', u))})")
        p0 = vP + 4*u*NSPLIT
        for sp in range(1, NSPLIT):
            for h in range(2): a(f"v_pk_add_f32 v[{p0+2*h}:{p0+2*h+1}], v[{p0+2*h}:{p0+2*h+1}], v[{p0+4*sp+2*h}:{p0+4*sp+2*h+1}]")
        t = p0 + 4
        for r in range(4): a(f"v_mul_f32 v{t+r}, {NL2E}, v{p0+r}")
        for r in range(4): a(f"v_exp_f32 v{t+r}, v{t+r}")
        for r in range(4): a(f"v_add_f32 v{t+r}, 1.0, v{t+r}")
        for r in range(4): a(f"v_rcp_f32 v{t+r}, v{t+r}")
        for h in range(2): a(f"v_pk_mul_f32 v[{p0+2*h}:{p0+2*h+1}], v[{p0+2*h}:{p0+2*h+1}], v[{t+2*h}:{t+2*h+1}]")
        a(f"s_waitcnt lgkmcnt({min(15, 15 - 3*u + u)})")
        s0 = vACC + 16*u
        for sl in range(3):
            for h in range(2): a(f"v_pk_add_f32 v[{s0+2*h}:{s0+2*h+1}], v[{s0+2*h}:{s0+2*h+1}], v[{s0+4+4*sl+2*h}:{s0+4+4*sl+2*h+1}]")
        for h in range(2): a(f"v_pk_mul_f32 v[{s0+2*h}:{s0+2*h+1}], v[{s0+2*h}:{s0+2*h+1}], v[{p0+2*h}:{p0+2*h+1}]")
        for h in range(2): a(f"v_cvt_pk_bf16_f32 v{s0+h}, v{s0+2*h}, v{s0+2*h+1}")
        a(f"ds_write_b64 v{vYW}, v[{s0}:{s0+1}] offset:{i*32*YROW + j*64}")
    a("s_waitcnt lgkmcnt(0)")
    a("s_barrier")
    Y = vACC
    for i in range(3): a(f"v_add_u32 v{12+i}, {L_Y}, v{12+i}")
    for i in range(3): a(f"ds_read_b128 v[{Y+4*i}:{Y+4*i+3}], v{12+i}")
    a("s_waitcnt vmcnt(0)")
    for i in range(3):
        a(f"s_waitcnt lgkmcnt({2-i})")
        T = vACC + 16
        for r in range(4):
            y = Y + 4*i + r; x = vXD + 4*i + r
            a(f"v_lshlrev_b32 v{T}, 16, v{y}")
            a(f"v_and_b32 v{T+1}, 0xffff0000, v{y}")
            a(f"v_lshlrev_b32 v{T+2}, 16, v{x}")
            a(f"v_and_b32 v{T+3}, 0xffff0000, v{x}")
            a(f"v_pk_add_f32 v[{T}:{T+1}], v[{T}:{T+1}], v[{T+2}:{T+3}]")
            a(f"v_cvt_pk_bf16_f32 v{x}, v{T}, v{T+1}")
        a(f"buffer_store_dwordx4 v[{vXD+4*i}:{vXD+4*i+3}], v{vXO+i}, s[{sO}:{sO+3}], s37 offen")
    if STAMP:
        a("s_waitcnt vmcnt(0)")
        a("s_memrealtime s[68:69]")
        a("s_waitcnt lgkmcnt(0)")
        a("v_mov_b32 v16, s60"); a("v_mov_b32 v17, s64"); a("v_mov_b32 v18, s66"); a("v_mov_b32 v19, s68")
        a("s_lshl_b32 s57, s2, 2"); a("s_add_u32 s57, s57, s3"); a("s_lshl_b32 s57, s57, 4")
        a(f"s_add_u32 s57, s57, {WSEND + 0x30000}")
        a("v_mov_b32 v20, s57")
        a("s_mov_b64 exec, 1")
        a("global_store_dwordx4 v20, v[16:19], s[58:59]")
    a("LD_end:")
    return a
```

```python
S, D, F, H, DH = 2048, 576, 4608, 32, 18
KS = 36
NSPLIT = 5
def al(x): return (x + 4095) // 4096 * 4096
XN = 0
WL = al(XN + 64*KS*1024)
WOF = al(WL + 32*KS*3*1024 + 8192)
HB = al(WOF + 18*KS*1024)
QM = al(HB + 64*288*1024)
KV = al(QM + 32*64*1024)
PL = al(KV + 32*64*3072)
OF = al(PL + 32*4*2048*2)
PART = al(OF + 64*KS*1024)
WSEND = al(PART + NSPLIT*64*18*4096)
A_X, A_WQKV, A_WO, A_BX, A_WG, A_WU, A_WD, A_OUT, A_DBG, A_WS = [8*i for i in range(10)]
SZ_X = S*D*2; SZ_WQKV = D*3*D*2; SZ_WO = D*D*2; SZ_WG = D*F*2; SZ_WD = F*D*2
import math
QSCALE = math.log2(math.e) / math.sqrt(DH)
def f2u(x):
    import struct
    return struct.unpack("<I", struct.pack("<f", x))[0]
def hexf(x): return "0x%08x" % f2u(x)
def srd(a, s, ptr_lo, size, off=0):
    if off:
        a(f"s_add_u32 s{s}, s{ptr_lo}, {off}")
        a(f"s_addc_u32 s{s+1}, s{ptr_lo+1}, 0")
    else:
        a(f"s_mov_b32 s{s}, s{ptr_lo}")
        a(f"s_mov_b32 s{s+1}, s{ptr_lo+1}")
    a(f"s_mov_b32 s{s+2}, {size}")
    a(f"s_mov_b32 s{s+3}, 0x20000")
```

```python
import sys, importlib
sys.path.insert(0, "gen")
from asmlib import *
from layout import *
HEADER = open("recurrent_scan__mha_block__geglu_ffn__prompt.s.ref").read().split("; Override launch")[0]
def build(kernels, path):
    t = HEADER
    for (n, a, g, b, l, v, ac) in kernels:
        t += f"; @launch kernel={n} grid=({g},1,1) block=({b},1,1) lds={l}\n"
    t += '.amdgcn_target "amdgcn-amd-amdhsa--gfx950"\n'
    seen = set()
    for (n, a, g, b, l, v, ac) in kernels:
        if n in seen: continue
        seen.add(n)
        t += kernel_text(n, a.text(), v, ac)
    seen = set()
    for (n, a, g, b, l, v, ac) in kernels:
        if n in seen: continue
        seen.add(n)
        t += desc_text(n, v, ac)
    open(path, "w").write(t)
if __name__ == "__main__":
    which = sys.argv[1] if len(sys.argv) > 1 else "abcd"
    out = sys.argv[2] if len(sys.argv) > 2 else "recurrent_scan__mha_block__geglu_ffn__prompt.s"
    ks = []
    if "a" in which:
        import ka; ks.append(("prep_kernel", ka.gen_a(), ka.GRID_A, 256, 0, 48, 48))
    if "b" in which:
        import kb; ks.append(("gemm1_kernel", kb.gen_b(), 256, 512, kb.LDS_B, 256, kb.ACC_B))
    if "c" in which:
        import kc; ks.append(("attn_down_kernel", kc.gen_c(), 256, kc.BLOCK_C, kc.LDS_C, kc.VGPR_C, kc.VGPR_C))
    if "d" in which:
        import kd; ks.append(("final_kernel", kd.gen_d(), kd.GRID_D, kd.BLOCK_D, kd.LDS_D, kd.VGPR_D, kd.ACC_D))
    build(ks, out)
    for k in ks: print(k[0], "instrs", len(k[1].L), "pads", k[1].pads)
```
